```python
import torch

def _softmax(x, axis=-1):
    return torch.softmax(x, dim=axis)
def _gelu(x):
    return torch.nn.functional.gelu(x, approximate="tanh")
def _silu(x):
    return torch.nn.functional.silu(x)
def _sigmoid(x):
    return torch.sigmoid(x)
def _layernorm(x, axis=-1, eps=1e-5):
    m = x.mean(dim=axis, keepdim=True)
    v = x.var(dim=axis, keepdim=True, unbiased=False)
    return (x - m) / torch.sqrt(v + eps)
def _scatter_add(tgt, idx, src, axis=0):
    return tgt.clone().index_add_(axis, idx, src)
def _segment_sum(src, seg, n):
    out = torch.zeros((n,) + src.shape[1:], dtype=src.dtype)
    return out.index_add_(0, seg, src)
def _pad(x, pw):
    flat = tuple(v for pair in reversed(pw) for v in pair)
    return torch.nn.functional.pad(x, flat)

kernel_name = 'parallel_sum__ssm_conv_s5__dense_activation_relu__prompt'

def setup_inputs():

    _w = (lambda a: (lambda t: t.to(torch.bfloat16) if t.is_floating_point() else t)(torch.as_tensor(a)))
    def _A_setup():
        B, S, D = 1, 2048, 512
        P = D
        Lambda_re = -0.5 * (lambda _x: torch.exp(torch.as_tensor(_x)))((lambda *s: torch.randn(*s, dtype=torch.bfloat16) * 0.8)(P))
        Lambda_im = (lambda *s: torch.randn(*s, dtype=torch.bfloat16) * 0.8)(P) * 1.0
        B_re = (lambda *s: torch.randn(*s, dtype=torch.bfloat16) * 0.8)(P, D) * (D ** -0.5)
        B_im = (lambda *s: torch.randn(*s, dtype=torch.bfloat16) * 0.8)(P, D) * (D ** -0.5)
        C_re = (lambda *s: torch.randn(*s, dtype=torch.bfloat16) * 0.8)(D, P) * (P ** -0.5)
        C_im = (lambda *s: torch.randn(*s, dtype=torch.bfloat16) * 0.8)(D, P) * (P ** -0.5)
        log_dt = (lambda *s: torch.randn(*s, dtype=torch.bfloat16) * 0.8)(P) * 0.3 - 2.0
        Dskip = (lambda *s: torch.randn(*s, dtype=torch.bfloat16) * 0.8)(D)
        return {
            "x": _w((lambda *s: torch.randn(*s, dtype=torch.bfloat16) * 0.05)(B, S, D)),
            "Lambda_re": _w(Lambda_re),
            "Lambda_im": _w(Lambda_im),
            "B_re": _w(B_re),
            "B_im": _w(B_im),
            "C_re": _w(C_re),
            "C_im": _w(C_im),
            "log_dt": _w(log_dt),
            "Dskip": _w(Dskip),
        }
    _A_in = _A_setup()

    def _B_setup():
        B, S, D, Dff = 1, 2048, 512, 1376
        return {
            "x": _w((lambda *s: torch.randn(*s, dtype=torch.bfloat16) * 0.05)(B, S, D)),
            "w1": _w((lambda *s: torch.randn(*s, dtype=torch.bfloat16) * 0.05)(D, Dff)),
            "w2": _w((lambda *s: torch.randn(*s, dtype=torch.bfloat16) * 0.05)(Dff, D)),
        }
    _B_in = _B_setup()

    return {
        "A_x": _A_in["x"],
        "A_Lambda_re": _A_in["Lambda_re"],
        "A_Lambda_im": _A_in["Lambda_im"],
        "A_B_re": _A_in["B_re"],
        "A_B_im": _A_in["B_im"],
        "A_C_re": _A_in["C_re"],
        "A_C_im": _A_in["C_im"],
        "A_log_dt": _A_in["log_dt"],
        "A_Dskip": _A_in["Dskip"],
        "B_x": _B_in["x"],
        "B_w1": _B_in["w1"],
        "B_w2": _B_in["w2"],
    }

def reference(A_x, A_Lambda_re, A_Lambda_im, A_B_re, A_B_im, A_C_re, A_C_im, A_log_dt, A_Dskip, B_x, B_w1, B_w2):
    def _A_ref(x, Lambda_re, Lambda_im, B_re, B_im, C_re, C_im, log_dt, Dskip):
        Bsz, L, H = x.shape
        Lam = Lambda_re + 1j * Lambda_im
        Bmat = B_re + 1j * B_im
        Cmat = C_re + 1j * C_im
        dt = torch.exp(log_dt)
        Lam_bar = torch.exp(dt * Lam)
        B_bar = ((Lam_bar - 1.0) / Lam)[:, None] * Bmat
        Bu = torch.einsum("bld,pd->blp", x + 0j, B_bar)
        h = torch.zeros_like(Bu[:, 0, :])
        hs = []
        for t in range(L):
            h = Lam_bar[None, :] * h + Bu[:, t, :]
            hs.append(h)
        hseq = torch.stack(hs, 1)
        y = 2.0 * torch.einsum("blp,dp->bld", hseq, Cmat).real + x * Dskip[None, None, :]
        return y

    def _B_ref(x, w1, w2):
        h = torch.einsum("bsd,df->bsf", x, w1)
        zero = torch.zeros_like(h)
        h = torch.maximum(h, zero)
        return torch.einsum("bsf,fd->bsd", h, w2)

    x = A_x
    xn = _layernorm(x, axis=-1)
    return x + _A_ref(xn, A_Lambda_re, A_Lambda_im, A_B_re, A_B_im, A_C_re, A_C_im, A_log_dt, A_Dskip) + _B_ref(xn, B_w1, B_w2)
```

```python
KN = "parallel_sum__ssm_conv_s5__dense_activation_relu__prompt_kernel"
HEADER = open('parallel_sum__ssm_conv_s5__dense_activation_relu__prompt.s.ref').read().split('; Override launch')[0]

class Asm:
    def __init__(self):
        self.lines = []
        self.nlab = 0
    def __call__(self, s):
        for l in s.strip('\n').split('\n'):
            self.lines.append('    ' + l.strip())
    def c(self, s):
        self.lines.append('    ; ' + s)
    def label(self, l):
        self.lines.append(l + ':')
    def newlabel(self, p='L'):
        self.nlab += 1
        return f'{p}_{self.nlab}'
    def text(self):
        return '\n'.join(self.lines) + '\n'

def v(i, n=1):
    return f'v{i}' if n == 1 else f'v[{i}:{i+n-1}]'
def a(i, n=1):
    return f'a{i}' if n == 1 else f'a[{i}:{i+n-1}]'
def s(i, n=1):
    return f's{i}' if n == 1 else f's[{i}:{i+n-1}]'

def kernel_begin(name):
    return f".globl {name}\n.p2align 8\n.type {name},@function\n{name}:\n"

def kernel_desc(name, vgpr=256, accum=256, sgpr=102):
    return f""".p2align 6
.amdhsa_kernel {name}
  .amdhsa_next_free_vgpr {vgpr}
  .amdhsa_next_free_sgpr {sgpr}
  .amdhsa_accum_offset {accum}
  .amdhsa_group_segment_fixed_size 0
  .amdhsa_kernarg_size 120
  .amdhsa_user_sgpr_count 2
  .amdhsa_user_sgpr_kernarg_segment_ptr 1
  .amdhsa_system_sgpr_workgroup_id_x 1
.end_amdhsa_kernel
"""

def make_file(kernels):
    out = HEADER
    if len(kernels) == 1 and kernels[0]['name'] == KN:
        k = kernels[0]
        out += f"; @launch grid=({k['grid']},1,1) block=({k['block']},1,1) lds={k['lds']}\n"
    else:
        for k in kernels:
            out += f"; @launch kernel={k['name']} grid=({k['grid']},1,1) block=({k['block']},1,1) lds={k['lds']}\n"
    out += '.amdgcn_target "amdgcn-amd-amdhsa--gfx950"\n.text\n'
    seen = set()
    for k in kernels:
        if k['name'] in seen: continue
        seen.add(k['name'])
        out += kernel_begin(k['name']) + k['body'] + '    s_endpgm\n'
    out += '.section .rodata,"a"\n'
    seen = set()
    for k in kernels:
        if k['name'] in seen: continue
        seen.add(k['name'])
        out += kernel_desc(k['name'], k.get('vgpr', 256), k.get('accum', 256), k.get('sgpr', 102))
    return out

def srd(A, d, base, nbytes):
    A(f"s_mov_b32 s{d}, s{base}")
    A(f"s_mov_b32 s{d+1}, s{base+1}")
    A(f"s_mov_b32 s{d+2}, {nbytes}")
    A(f"s_mov_b32 s{d+3}, 0x20000")
```

```python
import re
from asmlib import KN, make_file

TRANS = ('v_exp_f32','v_log_f32','v_rcp_f32','v_rsq_f32','v_sqrt_f32','v_sin_f32','v_cos_f32','v_rcp_iflag_f32')

def regs_of(op):
    op = op.strip()
    neg = op.lstrip('-|').rstrip('|')
    m = re.fullmatch(r'([vas])(\d+)', neg)
    if m: return {(m.group(1), int(m.group(2)))}
    m = re.fullmatch(r'([vas])\[(\d+):(\d+)\]', neg)
    if m: return {(m.group(1), i) for i in range(int(m.group(2)), int(m.group(3)) + 1)}
    if neg in ('vcc', 'vcc_lo', 'vcc_hi'): return {('x', 'vcc')}
    if neg in ('exec', 'exec_lo', 'exec_hi'): return {('x', 'exec')}
    if neg == 'm0': return {('x', 'm0')}
    return set()

class Ins:
    def __init__(self, text):
        self.text = text
        t = text.split(';')[0].strip()
        self.label = None
        if t.endswith(':'):
            self.label = t[:-1]; self.op = None; return
        parts = t.split(None, 1)
        self.op = op = parts[0]
        rest = parts[1] if len(parts) > 1 else ''
        ops = [o.strip() for o in re.split(r',\s*(?![^\[]*\])', rest)] if rest else []
        mods = ''
        if ops:
            sp = ops[-1].split(None, 1)
            ops[-1] = sp[0]
            if len(sp) > 1: mods = sp[1]
        self.ops = ops; self.mods = mods
        R = [regs_of(o) for o in ops]
        self.w = set(); self.r = set()
        self.kind = 'other'
        self.A = self.B = self.C = self.D = None
        self.slots = 1
        self.target = None
        if op.startswith('v_mfma'):
            self.kind = 'mfma'
            self.D, self.A, self.B, self.C = R[0], R[1], R[2], R[3]
            self.w = set(R[0]); self.r = R[1] | R[2] | R[3]
            self.passes = 8 if '32x32x16' in op else 4
        elif op.startswith('v_'):
            self.kind = 'valu'
            if op.startswith('v_permlane') or op.startswith('v_swap'):
                self.w = R[0] | R[1]; self.r = R[0] | R[1]
            elif op.startswith('v_cmpx'):
                raise Exception('no cmpx')
            elif op.startswith(('v_add_co', 'v_sub_co', 'v_addc_co', 'v_subb_co')):
                self.w = R[0] | R[1]; self.r = set().union(*R[2:])
            else:
                self.w = set(R[0]); self.r = set().union(*R[1:]) if len(R) > 1 else set()
                if op.startswith(('v_fmac', 'v_mac', 'v_pk_fmac', 'v_dot2c')): self.r |= R[0]
                if op.startswith('v_writelane'): self.r |= R[0]
            self.trans = op.replace('_e32', '').replace('_e64', '') in TRANS
            self.dpp = ('quad_perm' in mods or 'row_' in mods or 'wave_' in mods or '_dpp' in op)
        elif op.startswith('ds_'):
            self.kind = 'ds'
            if op.startswith(('ds_read', 'ds_bpermute', 'ds_permute', 'ds_swizzle')) or '_rtn' in op:
                self.w = set(R[0]); self.r = set().union(*R[1:])
            else:
                self.r = set().union(*R)
        elif op.startswith(('buffer_', 'global_')):
            self.kind = 'vmem'
            self.lds = bool(re.search(r'\blds\b', mods)) or ops[-1] == 'lds'
            if 'load' in op and not self.lds:
                self.w = set(R[0]); self.r = set().union(*R[1:])
                if 'd16' in op: self.r |= R[0]
            else:
                self.r = set().union(*R)
            if self.lds: self.r |= {('x', 'm0')}
            self.wide_store = op.startswith(('buffer_store_dwordx3', 'buffer_store_dwordx4', 'global_store_dwordx3', 'global_store_dwordx4'))
            self.sdata = R[0] if 'store' in op and op.startswith('buffer') else (R[1] if 'store' in op else set())
        elif op.startswith('s_'):
            self.kind = 'salu'
            if op == 's_nop': self.slots = int(ops[0]) + 1
            elif op.startswith(('s_cbranch', 's_branch')): self.target = ops[0]
            elif op.startswith(('s_cmp', 's_bitcmp', 's_waitcnt', 's_barrier', 's_endpgm', 's_sleep', 's_setprio')):
                self.r = set().union(*R) if R else set()
            else:
                self.w = set(R[0]) if R else set(); self.r = set().union(*R[1:]) if len(R) > 1 else set()
                if 'saveexec' in op: self.w |= {('x', 'exec')}
                if op.startswith(('s_addk', 's_mulk')): self.r |= R[0]
        else:
            raise Exception('unknown instr ' + text)

def isvg(s): return {x for x in s if x[0] in 'va'}
def issg(s): return {x for x in s if x[0] == 's' or x == ('x', 'vcc')}

def need(p, c):
    n = 0
    if p.kind == 'valu':
        pv = isvg(p.w); ps = issg(p.w)
        if c.kind == 'mfma' and pv & c.r: n = max(n, 2)
        if c.kind == 'valu':
            if pv & c.r:
                if c.op.startswith(('v_readfirstlane', 'v_readlane')): n = max(n, 1)
                if c.op.startswith('v_permlane') or c.dpp: n = max(n, 2)
                if p.trans: n = max(n, 1)
            if ps & c.r:
                n = max(n, 4 if c.op.startswith(('v_readlane', 'v_writelane')) else 2)
        if c.kind == 'vmem' and ps & c.r: n = max(n, 5)
        if c.kind == 'salu' and ps & c.r and not c.op.startswith('s_waitcnt'): n = max(n, 1)
        if c.kind == 'salu' and c.op.startswith('s_cbranch_vcc') and ('x', 'vcc') in ps: n = max(n, 1)
        if ('x', 'exec') in p.w: raise Exception('valu exec write')
    elif p.kind == 'mfma':
        big = p.passes == 8
        if c.kind == 'mfma':
            if p.D & c.C:
                if not (p.D == c.C and p.passes == c.passes): n = max(n, 10 if big else 6)
            if p.D & (c.A | c.B): n = max(n, 12 if big else 8)
            if (p.D & c.D) and not (p.D & c.C): n = max(n, 12 if big else 8)
        elif c.kind in ('valu', 'ds', 'vmem'):
            if p.D & (c.r | c.w): n = max(n, 12 if big else 8)
            if c.kind == 'valu' and p.C & c.w: n = max(n, 7 if big else 3)
    elif p.kind == 'salu':
        if ('x', 'm0') in p.w and c.kind == 'vmem' and c.lds: n = max(n, 1)
    elif p.kind == 'vmem':
        if p.wide_store and p.sdata & c.w: n = max(n, 2 if c.kind == 'valu' else 1)
    return n

def fix_hazards(lines, verbose=False):
    ins = [Ins(l) if l.strip() and not l.strip().startswith((';', '.')) else None for l in lines]
    items = [(l, i) for l, i in zip(lines, ins)]
    total = 0
    while True:
        labels = {it[1].label: k for k, it in enumerate(items) if it[1] is not None and it[1].label}
        fixes = {}
        N = len(items)
        for k, (l, p) in enumerate(items):
            if p is None or p.op is None: continue
            if p.kind not in ('valu', 'mfma', 'salu', 'vmem'): continue
            if p.kind == 'salu' and ('x', 'm0') not in p.w: continue
            if p.kind == 'vmem' and not p.wide_store: continue
            lim = 12 if p.kind == 'mfma' else 5
            stack = [(k + 1, 0)] if not (p.op in ('s_branch', 's_endpgm')) else []
            seen = set()
            while stack:
                j, d = stack.pop()
                while j < N and d < lim:
                    if (j, d) in seen: break
                    seen.add((j, d))
                    c = items[j][1]
                    if c is None or c.op is None: j += 1; continue
                    nd = need(p, c)
                    if nd > d:
                        fixes[j] = max(fixes.get(j, 0), nd - d)
                        break
                    d += c.slots
                    if c.op == 's_endpgm': break
                    if c.target is not None:
                        stack.append((labels[c.target], d))
                        if c.op == 's_branch': break
                    j += 1
        if not fixes: break
        new = []
        last = -100
        for k, it in enumerate(items):
            if k in fixes and k - last > 14:
                n = fixes[k]; last = k
                t = f"    s_nop {n-1}"
                if verbose: print('nop', n, 'before', it[0].strip())
                new.append((t, Ins(t))); total += n
            new.append(it)
        items = new
    return [it[0] for it in items], total

class K:
    def __init__(self):
        self.lines = []
        self.vm = []; self.lg = []
        self.nlab = 0; self.ntok = 0
    def __call__(self, s):
        for l in s.strip('\n').split('\n'):
            l = l.strip()
            if l: self.lines.append('    ' + l)
    def c(self, s): self.lines.append('    ; ' + s)
    def label(self, l): self.lines.append(l + ':')
    def newlabel(self, p='L'):
        self.nlab += 1; return f'{p}_{self.nlab}'
    def tok(self):
        self.ntok += 1; return self.ntok
    def vmop(self, s):
        self(s); t = self.tok(); self.vm.append(t)
        assert len(self.vm) <= 63, 'vmcnt overflow'
        return t
    def dsop(self, s):
        self(s); t = self.tok(); self.lg.append(t); return t
    def wait(self, vm=None, lg=None):
        parts = []
        if vm is not None:
            if vm == 'all':
                if self.vm: parts.append('vmcnt(0)'); self.vm = []
            elif vm in self.vm:
                i = self.vm.index(vm); n = len(self.vm) - 1 - i
                parts.append(f'vmcnt({n})'); self.vm = self.vm[i+1:]
        if lg is not None:
            if lg == 'all':
                if self.lg: parts.append('lgkmcnt(0)'); self.lg = []
            elif lg in self.lg:
                i = self.lg.index(lg); n = len(self.lg) - 1 - i
                if n > 15: n = 15; i = len(self.lg) - 1 - 15
                parts.append(f'lgkmcnt({n})'); self.lg = self.lg[i+1:]
        if parts: self('s_waitcnt ' + ' '.join(parts))
    def text(self, verbose=False):
        ls, n = fix_hazards(self.lines, verbose)
        self.nops = n
        return '\n'.join(ls) + '\n'

def v(i, n=1): return f'v{i}' if n == 1 else f'v[{i}:{i+n-1}]'
def a(i, n=1): return f'a{i}' if n == 1 else f'a[{i}:{i+n-1}]'
def s(i, n=1): return f's{i}' if n == 1 else f's[{i}:{i+n-1}]'
```

```python
import sys
from klib import *

SLOT = 36864; WOFF = 16384; BOFF = 28672
ZA0, ZAS = 0, 8192
ZB0, ZBS = 36864, 8192
ZC0, ZCS = 73728, 16384
T0 = 139264
MISC = 159744
RS, NMR, MM, SD = MISC, MISC + 512, MISC + 1024, MISC + 1536
CS = MISC + 2048
CNT = MISC + 2688
CIN = MISC + 2816
EX1 = 32768
C_E, C_CARRY, C_HIDACK, C_HACK, C_CLAND, C_CCONS, C_FDUMP, C_SDUMP, C_NONCE, C_FRES = 0, 1, 2, 3, 4, 8, 12, 14, 15, 16
LDSB = 163840
NSTEP = 150
GR = 16 << 20
FL = 17 << 20
TS = 18 << 20
WSB = 32 << 20
OOB = 0x7F000000
SPIN = 200000

sW, sC, sG, sCB, sPAR, sKB, sSLOT, sDELTA, sIT = 3, 4, 5, 6, 7, 8, 9, 10, 11
sT0, sT1, sT2, sT3 = 12, 13, 14, 15
sX1, sX2, sWB, sBB = 16, 17, 18, 19
sMX, sMW = 20, 21
sNONCE, sMASK, sSPIN = 22, 23, 24
sHI = 25
sZA, sZB, sZC, sT = 26, 27, 28, 29
sHROW = 30
sAROW = 31
sFLG = 32
sM0, sM1 = 34, 36
sTSB = 38
sTM = 40
sF0 = 42
R_X, R_1, R_2, R_3, R_W2, R_WS, R_T = 48, 52, 56, 60, 64, 68, 72
sP = 76

def gen(P):
    global SPIN
    SPIN = P.get('spin', SPIN)
    k = K()
    TSON = P.get('ts', 0)
    role = [None]
    def stamp(i):
        if not TSON: return
        k(f"s_memtime s[{sTM}:{sTM+1}]\ns_waitcnt lgkmcnt(0)")
        k.lg = []
        k(f"v_writelane_b32 v{vTS}, s{sTM}, {i}")
    vTS = 7
    def srdw(d, nbytes):
        k(f"s_mov_b32 s{d+2}, {nbytes}\ns_mov_b32 s{d+3}, 0x20000")
    def one_lane(body):
        k("s_mov_b64 exec, 1"); body(); k("s_mov_b64 exec, -1")
    def lds_spin(vaddr, off, target, vt):
        L = k.newlabel('SP'); D = k.newlabel('SD')
        k.wait(lg='all')
        k(f"s_mov_b32 s{sSPIN}, 0")
        k.label(L)
        k(f"ds_read_b32 v{vt}, v{vaddr} offset:{off}\ns_add_u32 s{sSPIN}, s{sSPIN}, 1\ns_waitcnt lgkmcnt(0)")
        k(f"v_readfirstlane_b32 s{sT3}, v{vt}\ns_cmp_gt_u32 s{sSPIN}, {SPIN}\ns_cbranch_scc1 {D}")
        k(f"s_cmp_lt_u32 s{sT3}, {target}\ns_cbranch_scc1 {L}")
        k.label(D)
    def cmul(dr, di, ar, ai, br, bi):
        k(f"v_mul_f32 v{dr}, v{ar}, v{br}\nv_mul_f32 v{di}, v{ar}, v{bi}")
        k(f"v_fma_f32 v{dr}, -v{ai}, v{bi}, v{dr}\nv_fmac_f32 v{di}, v{ai}, v{br}")
    def csq(dr, di, ar, ai):
        k(f"v_mul_f32 v{dr}, v{ar}, v{ar}\nv_add_f32 v{di}, v{ar}, v{ar}")
        k(f"v_fma_f32 v{dr}, -v{ai}, v{ai}, v{dr}\nv_mul_f32 v{di}, v{di}, v{ai}")
    def cfma(dr, di, ar, ai, br, bi):
        k(f"v_fmac_f32 v{dr}, v{ar}, v{br}\nv_fmac_f32 v{di}, v{ar}, v{bi}")
        k(f"v_fma_f32 v{dr}, -v{ai}, v{bi}, v{dr}\nv_fmac_f32 v{di}, v{ai}, v{br}")
    def rbf(d, src):
        k(f"v_cvt_pk_bf16_f32 v{d}, v{src}, v{src}\nv_lshlrev_b32 v{d}, 16, v{d}")

    k("s_cmp_ge_u32 s2, 256\ns_cbranch_scc1 END")
    k(f"s_load_dwordx2 s[{R_X}:{R_X+1}], s[0:1], 0")
    k(f"v_lshrrev_b32 v1, 6, v0\nv_and_b32 v0, 63, v0")
    k(f"v_readfirstlane_b32 s{sT0}, v1")
    k(f"s_load_dwordx2 s[{R_W2}:{R_W2+1}], s[0:1], 88\ns_load_dwordx2 s[{R_WS}:{R_WS+1}], s[0:1], 112")
    k(f"s_and_b32 s{sT1}, s2, 7\ns_lshr_b32 s{sT2}, s2, 3")
    mp = P.get('map', 0)
    if mp in (0, 1):
        k(f"s_lshr_b32 s{sC}, s{sT2}, 3\ns_lshl_b32 s{sC}, s{sC}, 2\ns_and_b32 s{sT3}, s{sT1}, 3\ns_add_u32 s{sC}, s{sC}, s{sT3}")
        k(f"s_lshr_b32 s{sG}, s{sT1}, 2\ns_lshl_b32 s{sG}, s{sG}, 3\ns_and_b32 s{sT3}, s{sT2}, 7\ns_add_u32 s{sG}, s{sG}, s{sT3}")
        if mp == 0:
            k(f"s_lshr_b32 s{sPAR}, s{sG}, 3\ns_and_b32 s{sCB}, s{sG}, 7")
        else:
            k(f"s_and_b32 s{sPAR}, s{sG}, 1\ns_lshr_b32 s{sCB}, s{sG}, 1")
    else:
        k(f"s_lshr_b32 s{sC}, s{sT2}, 2\ns_lshl_b32 s{sC}, s{sC}, 1\ns_and_b32 s{sT3}, s{sT1}, 1\ns_add_u32 s{sC}, s{sC}, s{sT3}")
        k(f"s_lshr_b32 s{sG}, s{sT1}, 1\ns_lshl_b32 s{sG}, s{sG}, 2\ns_and_b32 s{sT3}, s{sT2}, 3\ns_add_u32 s{sG}, s{sG}, s{sT3}")
        k(f"s_lshr_b32 s{sPAR}, s{sG}, 3\ns_and_b32 s{sCB}, s{sG}, 7")
    k(f"s_and_b32 s{sW}, s{sT0}, 3")
    srdw(R_X, 2048 * 1024); srdw(R_W2, 1376 * 1024); srdw(R_WS, WSB)
    rot = P.get('rot', 1)
    if rot == 0: k(f"s_mov_b32 s{sKB}, 0")
    elif rot == 1: k(f"s_lshl_b32 s{sKB}, s{sC}, 1\ns_add_u32 s{sKB}, s{sKB}, s{sG}\ns_and_b32 s{sKB}, s{sKB}, 7")
    elif rot == 2: k(f"s_lshr_b32 s{sKB}, s{sC}, 2\ns_add_u32 s{sKB}, s{sKB}, s{sG}\ns_and_b32 s{sKB}, s{sKB}, 1\ns_lshl_b32 s{sKB}, s{sKB}, 2")
    k(f"s_mov_b32 s{sHI}, 0xffff0000")
    k(f"s_lshl_b32 s{sX1}, s{sC}, 17\ns_lshl_b32 s{sT1}, s{sT0}, 13\ns_add_u32 s{sX1}, s{sX1}, s{sT1}\ns_add_u32 s{sX2}, s{sX1}, 65536")
    k(f"s_lshl_b32 s{sMX}, s{sT0}, 10")
    k(f"v_lshrrev_b32 v2, 4, v0\ns_and_b32 s{sT1}, s{sW}, 1\ns_lshl_b32 s{sT1}, s{sT1}, 2")
    k(f"v_add_u32 v2, s{sT1}, v2\nv_xor_b32 v2, v2, v0\nv_and_b32 v2, 7, v2\nv_lshlrev_b32 v2, 4, v2")
    k(f"v_lshrrev_b32 v3, 3, v0\nv_lshl_or_b32 v1, v3, 10, v2")
    k(f"v_lshrrev_b32 v2, 2, v0\nv_and_b32 v2, 4, v2\nv_xor_b32 v2, v2, v0\nv_and_b32 v2, 7, v2\nv_lshlrev_b32 v2, 4, v2\nv_lshl_or_b32 v5, v3, 10, v2")
    k(f"s_lshl_b32 s{sZA}, s{sW}, 13\ns_add_u32 s{sZB}, s{sZA}, {ZB0}\ns_lshl_b32 s{sZC}, s{sW}, 14\ns_add_u32 s{sZC}, s{sZC}, {ZC0}")
    k(f"s_lshl_b32 s{sT1}, s{sC}, 2\ns_add_u32 s{sT2}, s{sT1}, s{sW}\ns_mul_i32 s{sHROW}, s{sT2}, {NSTEP*1024}")
    k(f"s_lshl_b32 s{sT2}, s{sPAR}, 1\ns_add_u32 s{sT2}, s{sT2}, s{sT1}\ns_mul_i32 s{sAROW}, s{sT2}, {NSTEP*1024}")
    k(f"s_lshl_b32 s{sFLG}, s{sC}, 7\ns_add_u32 s{sFLG}, s{sFLG}, {FL}")
    if TSON:
        k(f"s_lshl_b32 s{sTSB}, s2, 3\ns_add_u32 s{sTSB}, s{sTSB}, s{sT0}\ns_lshl_b32 s{sTSB}, s{sTSB}, 8\ns_add_u32 s{sTSB}, s{sTSB}, {TS}")
        k(f"v_mov_b32 v{vTS}, 0")
    k("v_and_b32 v2, 3, v0\nv_bfe_u32 v3, v0, 2, 1\nv_lshl_or_b32 v2, v3, 4, v2\nv_bfe_u32 v3, v0, 3, 2\nv_lshl_or_b32 v2, v3, 2, v2")
    k(f"v_lshrrev_b32 v3, 1, v2\nv_and_b32 v3, 7, v3\nv_lshrrev_b32 v4, 5, v0\nv_xor_b32 v3, v3, v4")
    k(f"s_lshl_b32 s{sT1}, s{sW}, 1\nv_xor_b32 v3, s{sT1}, v3\nv_lshlrev_b32 v3, 4, v3")
    k(f"s_lshl_b32 s{sT1}, s{sW}, 12\nv_lshl_add_u32 v2, v2, 7, s{sT1}\nv_add_u32 v8, v2, v3")
    for j in range(1, 4): k(f"v_xor_b32 v{8+j}, {32*j}, v8")
    k(f"s_mov_b32 s{sSLOT}, 0")
    k(f"s_cmp_ge_u32 s{sT0}, 4\ns_cbranch_scc1 S_START")

    def dma_x(slot_s):
        return [
            (f"s_lshl_b32 s{sT0}, s{sKB}, 7\ns_add_u32 m0, s{slot_s}, s{sMX}\ns_add_u32 s{sT1}, s{sX1}, s{sT0}",
             f"buffer_load_dwordx4 v1, s[{R_X}:{R_X+3}], s{sT1} offen lds"),
            (f"s_add_u32 m0, m0, 8192\ns_add_u32 s{sT1}, s{sX2}, s{sT0}",
             f"buffer_load_dwordx4 v1, s[{R_X}:{R_X+3}], s{sT1} offen lds")]
    def emit_dma(lst):
        for pre, ld in lst:
            k(pre); k.vmop(ld)
    def next_kb():
        return f"s_add_u32 s{sKB}, s{sKB}, 1\ns_and_b32 s{sKB}, s{sKB}, 7"
    def slot_next():
        return (f"s_mov_b32 s{sDELTA}, {SLOT}\ns_cmp_eq_u32 s{sSLOT}, {2*SLOT}\ns_cselect_b32 s{sDELTA}, {-2*SLOT & 0xffffffff}, s{sDELTA}\n"
                f"s_add_u32 s{sSLOT}, s{sSLOT}, s{sDELTA}")
    def w2_dma(step_s, n, zone_s, zoff):
        out = []
        for i in range(2 * n):
            pre = ""
            if i == 0:
                pre += f"s_lshl_b32 s{sT1}, s{step_s}, 14\ns_lshl_b32 s{sT0}, s{sCB}, 7\ns_add_u32 s{sT1}, s{sT1}, s{sT0}\n"
            if i % 4 == 0:
                pre += f"s_add_u32 m0, s{zone_s}, {zoff + 1024*i}\n"
                if i: pre += f"s_add_u32 s{sT1}, s{sT1}, {8192 + 3072}\n"
            else:
                pre += f"s_add_u32 s{sT1}, s{sT1}, 7168\n"
            out.append((pre, f"buffer_load_dwordx4 v5, s[{R_W2}:{R_W2+3}], s{sT1} offen offset:{1024*(i%4)} lds"))
        return out
    def interleave(mf, fill):
        n = len(mf); per = [[] for _ in range(n)]
        for i, f in enumerate(fill): per[min(n - 1, i * n // max(1, len(fill)))].append(f)
        for m, fs in zip(mf, per):
            k(m)
            for f in fs: f()
    def T(s): return lambda: k(s)
    def TD(s): return lambda: k.dsop(s)
    def TV(pair): return lambda: (k(pair[0]), k.vmop(pair[1]))

    k(f"s_load_dwordx2 s[{R_1}:{R_1+1}], s[0:1], 80\ns_load_dwordx2 s[{R_2}:{R_2+1}], s[0:1], 40\ns_load_dwordx2 s[{R_3}:{R_3+1}], s[0:1], 48")
    k(f"s_load_dwordx2 s[{R_T}:{R_T+1}], s[0:1], 64")
    srdw(R_1, 512 * 2752); srdw(R_2, 512 * 1024); srdw(R_3, 512 * 1024); srdw(R_T, 1024)
    k(f"s_mul_i32 s{sT0}, s{sG}, 6\ns_lshl_b32 s{sT1}, s{sG}, 2\ns_add_u32 s{sT1}, s{sT1}, 22\ns_min_u32 s{sF0}, s{sT0}, s{sT1}")
    k(f"s_lshl_b32 s{sWB}, s{sF0}, 5\ns_mul_i32 s{sT0}, s{sW}, {16*2752}\ns_add_u32 s{sWB}, s{sWB}, s{sT0}")
    k(f"s_mul_i32 s{sMW}, s{sW}, 3072\ns_add_u32 s{sMW}, s{sMW}, {WOFF}")
    for i in range(3):
        k(f"v_add_u32 v6, {64*i}, v0\nv_mul_u32_u24 v12, 43691, v6\nv_lshrrev_b32 v12, 19, v12")
        k(f"v_mul_u32_u24 v13, 12, v12\nv_sub_u32 v6, v6, v13\nv_lshlrev_b32 v6, 4, v6\nv_mul_u32_u24 v12, 2752, v12")
        k(f"v_add_u32 v6, v6, v12\nv_subrev_u32 v{2+i}, {1024*i}, v6" if i else f"v_add_u32 v{2+i}, v6, v12")
    def dma_w1(slot_s):
        out = []
        for i in range(3):
            pre = f"s_mul_i32 s{sT1}, s{sKB}, {64*2752}\ns_add_u32 m0, s{slot_s}, s{sMW}\ns_add_u32 s{sT1}, s{sT1}, s{sWB}" if i == 0 else ""
            out.append((pre, f"buffer_load_dwordx4 v{2+i}, s[{R_1}:{R_1+3}], s{sT1} offen offset:{1024*i} lds"))
        return out
    k("s_waitcnt lgkmcnt(0)")
    stamp(0)
    k(f"s_mov_b32 s{sT2}, 0"); emit_dma(dma_x(sT2) + dma_w1(sT2)); k(next_kb())
    k(f"s_mov_b32 s{sT2}, {SLOT}"); emit_dma(dma_x(sT2) + dma_w1(sT2)); k(next_kb())
    k("v_bfe_u32 v6, v0, 2, 2\nv_lshrrev_b32 v16, 5, v0\nv_lshl_add_u32 v6, v16, 3, v6\nv_mul_u32_u24 v6, 192, v6")
    k("v_bfe_u32 v16, v0, 4, 1\nv_lshl_add_u32 v6, v16, 5, v6\nv_and_b32 v16, 3, v0\nv_lshl_add_u32 v6, v16, 3, v6")
    for j in range(4):
        k(f"s_xor_b32 s{sT0}, s{sW}, {j}\ns_mul_i32 s{sT0}, s{sT0}, 3072\ns_add_u32 s{sT0}, s{sT0}, {WOFF}\nv_add_u32 v{12+j}, s{sT0}, v6")
    def mk_sel(b):
        k(f"v_bfe_u32 v{b}, v0, 4, 1\nv_and_b32 v{b+1}, 15, v0\nv_cmp_eq_u32 vcc, v{b}, v{b+1}\nv_mov_b32 v{b+1}, 0x3f803f80")
        k(f"v_cndmask_b32 v{b}, 0, v{b+1}, vcc")
        k(f"v_mov_b32 v{b+1}, v{b}\nv_mov_b32 v{b+2}, v{b}\nv_mov_b32 v{b+3}, v{b}")
    mk_sel(108)
    for i in range(48, 108): k(f"v_mov_b32 v{i}, 0")
    k("v_lshlrev_b32 v0, 4, v0")
    FSET = [16, 32]
    def f_reads(j):
        b = FSET[j & 1]; j &= 3
        r = [f"ds_read_b128 v[{b}:{b+3}], v{8+j}"]
        for blk in range(3):
            for t in range(2):
                r.append(f"ds_read_b64_tr_b16 v[{b+4+4*blk+2*t}:{b+5+4*blk+2*t}], v{12+j} offset:{64*blk+768*t}")
        return r
    def f_mf(j):
        b = FSET[j & 1]
        return [f"v_mfma_f32_32x32x16_bf16 v[{48+16*i}:{63+16*i}], v[{b+4+4*i}:{b+7+4*i}], v[{b}:{b+3}], v[{48+16*i}:{63+16*i}]" for i in range(3)]
    def f_small():
        b = FSET[0]
        return [f"v_mfma_f32_16x16x32_bf16 v[{96+4*i}:{99+4*i}], v[108:111], v[{b+4+4*i}:{b+7+4*i}], v[{96+4*i}:{99+4*i}]" for i in range(3)]
    def bump(regs): return [T(f"v_add_u32 v{r}, s{sDELTA}, v{r}") for r in regs]
    def body(reads, mf, small, extra, dmas, nvm, last, pre_bar=None):
        nd = len(dmas)
        for j in range(3):
            k("s_waitcnt lgkmcnt(0)"); k.lg = []
            d = dmas[j * nd // 3:(j + 1) * nd // 3]
            m = mf(j)
            fill = [TD(x) for x in reads(j + 1)] + d + extra(j)
            if j == 0: m = m + small()
            interleave(m, fill)
        if not last:
            k(f"s_waitcnt vmcnt({nvm}) lgkmcnt(0)"); k.lg = []
            k(slot_next())
            k("s_barrier")
            for f in bump(range(8, 16)): f()
            interleave(mf(3), [TD(x) for x in reads(0)] + extra(3))
        else:
            k("s_waitcnt lgkmcnt(0)"); k.lg = []
            interleave(mf(3), extra(3))
    k("s_waitcnt vmcnt(5)\ns_barrier")
    stamp(1)
    for x in f_reads(0): k.dsop(x)
    k(f"s_mov_b32 s{sIT}, 0")
    k.label("F_LOOP")
    ldslot = f"s_sub_u32 s{sT2}, s{sSLOT}, {SLOT}\ns_cmp_eq_u32 s{sSLOT}, 0\ns_cselect_b32 s{sT2}, {2*SLOT}, s{sT2}"
    k.vm = []
    body(f_reads, f_mf, f_small, lambda j: [], [T(ldslot)] + [TV(x) for x in dma_x(sT2) + dma_w1(sT2)] + [T(next_kb())], 5, False)
    k(f"s_add_u32 s{sIT}, s{sIT}, 1\ns_cmp_lt_u32 s{sIT}, 6\ns_cbranch_scc1 F_LOOP")
    k.vm = []
    k(f"s_mul_i32 s{sIT}, s{sW}, 19")
    zc = w2_dma(sIT, 8, sZC, 0)
    body(f_reads, f_mf, f_small, lambda j: [], [TV(x) for x in zc], 16, False)
    tZC = list(k.vm)
    k(f"s_add_u32 s{sIT}, s{sIT}, 8")
    za = w2_dma(sIT, 4, sZA, 0)
    body(f_reads, f_mf, f_small, lambda j: [], [TV(x) for x in za], 0, True)
    tZA = k.vm[16:]
    stamp(2)
    k(f"v_lshrrev_b32 v16, 4, v0\nv_and_b32 v16, 15, v16\nv_lshlrev_b32 v16, 2, v16\nv_add_u32 v16, {CS}, v16")
    for i in range(3):
        k.dsop(f"ds_add_f32 v16, v{96+4*i} offset:{128*i}"); k.dsop(f"ds_add_f32 v16, v{97+4*i} offset:{128*i+64}")
    k("v_lshrrev_b32 v17, 4, v0")
    k("v_and_b32 v18, 3, v17\nv_bfe_u32 v19, v17, 2, 1\nv_lshl_or_b32 v18, v19, 4, v18\nv_bfe_u32 v19, v17, 3, 2\nv_lshl_or_b32 v18, v19, 2, v18")
    k(f"s_lshl_b32 s{sT0}, s{sW}, 5\nv_add_u32 v18, s{sT0}, v18\nv_lshlrev_b32 v18, 2, v18\nv_add_u32 v18, {RS}, v18")
    k(f"v_lshrrev_b32 v19, 5, v17\nv_lshlrev_b32 v19, 4, v19\nv_add_u32 v19, {CS}, v19")
    k("v_bfe_u32 v20, v17, 2, 2\nv_lshrrev_b32 v21, 5, v17\nv_lshl_add_u32 v20, v21, 2, v20\nv_lshlrev_b32 v20, 7, v20")
    k("v_bfe_u32 v21, v17, 3, 1\nv_lshl_add_u32 v20, v21, 6, v20\nv_bfe_u32 v21, v17, 4, 1\nv_lshl_add_u32 v20, v21, 5, v20")
    k("v_and_b32 v21, 3, v17\nv_lshl_add_u32 v20, v21, 3, v20")
    k(f"v_add_u32 v3, s{sZC}, v20\nv_xor_b32 v4, 64, v3")
    k(f"s_and_b32 s{sT1}, s{sW}, 1\ns_lshl_b32 s{sT1}, s{sT1}, 6\nv_xor_b32 v1, s{sT1}, v1\nv_xor_b32 v2, 64, v1")
    k(f"v_mov_b32 v21, {CNT}")
    k.wait(lg='all')
    k("s_barrier")
    stamp(3)
    k(f"s_add_u32 s{sIT}, s{sIT}, 4")
    emit_dma(w2_dma(sIT, 4, sZB, 0))
    tZB = k.vm[24:]
    tr = k.dsop("ds_read_b32 v6, v18"); k.dsop(f"ds_read_b32 v22, v18 offset:{NMR-RS}")
    k.dsop(f"ds_read_b32 v23, v21 offset:{4*C_NONCE}")
    def wreg(st): return ('a', 8 * st) if st < 16 else ('v', 104 + 8 * (st - 16))
    def w2_reads(st, off, a0=3, a1=4, dst=None):
        t, b = dst or wreg(st); r = []
        for cb2 in range(2):
            for tt in range(2):
                r.append(f"ds_read_b64_tr_b16 {t}[{b+4*cb2+2*tt}:{b+4*cb2+2*tt+1}], v{(a0,a1)[cb2]} offset:{off+1024*tt}")
        return r
    def cs_reads(blk):
        b = (24, 112, 24)[blk]
        return [f"ds_read_b128 v[{b+4*i}:{b+4*i+3}], v19 offset:{128*blk+32*i}" for i in range(4)]
    for x in cs_reads(0): k.dsop(x)
    tcs1 = [k.dsop(x) for x in cs_reads(1)]
    k.wait(vm=tZC[7])
    for st in range(4):
        for x in w2_reads(st, 2048 * st): tl = k.dsop(x)
    k.wait(lg=tcs1[-1])
    k(f"v_readfirstlane_b32 s{sNONCE}, v23")
    k(f"s_lshl_b32 s{sT2}, s{sF0}, 10\ns_add_u32 s{sT2}, s{sT2}, s{sHROW}")
    OUT = 8
    def epi(blk, ob):
        cb_ = (24, 112, 24)[blk]; ac = 48 + 16 * blk; L = []
        for i in range(0, 16, 2):
            L.append(f"v_pk_mul_f32 v[{cb_+i}:{cb_+i+1}], v[{cb_+i}:{cb_+i+1}], v[22:23] op_sel_hi:[1,0]")
        for i in range(0, 16, 2):
            L.append(f"v_pk_fma_f32 v[{ac+i}:{ac+i+1}], v[{ac+i}:{ac+i+1}], v[6:7], v[{cb_+i}:{cb_+i+1}] op_sel_hi:[1,0,1]")
        for i in range(0, 16, 2):
            L.append(f"v_cvt_pk_bf16_f32 v{ob+i//2}, v{ac+i}, v{ac+i+1}")
        for i in range(8):
            L.append(f"v_pk_max_i16 v{ob+i}, v{ob+i}, 0")
        return L
    for x in epi(0, 8): k(x)
    tcs2 = [k.dsop(x) for x in cs_reads(2)]
    k.wait(lg=tl)
    k(f"s_add_u32 s{sIT}, s{sIT}, 4")
    emit_dma(w2_dma(sIT, 3, sZC, 0))
    tZD = k.vm[-6:]
    k.wait(vm=tZC[15])
    for st in range(4, 8):
        for x in w2_reads(st, 2048 * st): tl = k.dsop(x)
    def hid_store(blk, ob):
        return [k.vmop(f"buffer_store_dwordx4 v[{ob+4*h}:{ob+4*h+3}], v0, s[{R_WS}:{R_WS+3}], s{sT2} offen offset:{(2048*blk+1024*h) % 4096} sc1") for h in range(2)]
    hid_store(0, 8)
    for x in epi(1, 40): k(x)
    hid_store(1, 40)
    k.wait(lg=tcs2[-1])
    for x in epi(2, 96): k(x)
    k(f"s_add_u32 s{sT2}, s{sT2}, 4096\ns_cmp_gt_u32 s{sG}, 10\ns_cselect_b32 s{sT2}, {OOB}, s{sT2}")
    tST = hid_store(2, 96)[-1]
    stamp(4)
    UL = P_UNITLOC
    def c_dma(u):
        ri, ph, cb2 = u >> 2, (u >> 1) & 1, u & 1
        zs, zo = UL[u]
        zs = {'a': sZA, 'b': sZB, 'c': sZC}[zs]
        R = (R_2, R_3)[ri]
        for i in range(4):
            if i == 0:
                k(f"s_add_u32 m0, s{zs}, {zo}\ns_add_u32 s{sT1}, s{sX1}, {cb2*32768 + ph*128}")
            else:
                k(f"s_add_u32 s{sT1}, s{sT1}, 7168")
            t = k.vmop(f"buffer_load_dwordx4 v{1+(i&1)}, s[{R}:{R+3}], s{sT1} offen offset:{1024*i} lds")
        return t
    k(f"s_lshl_b32 s{sX1}, s{sCB}, 16\ns_lshl_b32 s{sT0}, s{sW}, 8\ns_add_u32 s{sX1}, s{sX1}, s{sT0}")
    k.wait(lg=tl)
    c_dma(0); c_dma(1)
    k(f"v_add_u32 v16, s{sZA}, v20\nv_xor_b32 v17, 64, v16\nv_add_u32 v18, s{sZB}, v20\nv_xor_b32 v19, 64, v18")
    k.wait(vm=tZA[-1])
    for st in range(8, 12):
        for x in w2_reads(st, 2048 * (st - 8), 16, 17): tl = k.dsop(x)
    k.wait(vm=tZB[-1])
    for st in range(12, 16):
        for x in w2_reads(st, 2048 * (st - 12), 18, 19): tl2 = k.dsop(x)
    k.wait(lg=tl)
    c_dma(2); c_dma(3)
    k.wait(vm=tZD[-1])
    for st in range(16, 19):
        for x in w2_reads(st, 2048 * (st - 16)): tl3 = k.dsop(x)
    k.wait(lg=tl2)
    c_dma(4); c_dma(5)
    k.wait(lg=tl3)
    c_dma(6); tC = c_dma(7)
    stamp(5)
    k.wait(vm=tST)
    k("v_mov_b32 v6, 1")
    one_lane(lambda: k.dsop(f"ds_add_rtn_u32 v16, v21, v6 offset:{4*C_HIDACK}"))
    k.wait(lg='all')
    k(f"v_readfirstlane_b32 s{sT0}, v16\nv_mov_b32 v17, s{sNONCE}\ns_lshl_b32 s{sT1}, s{sG}, 2\ns_add_u32 s{sT1}, s{sT1}, s{sFLG}")
    k(f"s_cmp_eq_u32 s{sT0}, 3\ns_cselect_b32 s{sT1}, s{sT1}, {OOB}\nv_mov_b32 v16, 0")
    one_lane(lambda: k.vmop(f"buffer_store_dword v17, v16, s[{R_WS}:{R_WS+3}], s{sT1} offen sc1"))
    stamp(6)
    def poll_flags(soff, mask_s, vt, va):
        L = k.newlabel('PL'); D = k.newlabel('PD')
        k(f"s_mov_b32 s{sSPIN}, 0")
        k.label(L)
        k(f"buffer_load_dword v{vt}, v{va}, s[{R_WS}:{R_WS+3}], s{soff} offen sc1\ns_add_u32 s{sSPIN}, s{sSPIN}, 1\ns_waitcnt vmcnt(0)")
        k.vm = []
        k(f"v_cmp_eq_u32 vcc, s{sNONCE}, v{vt}\ns_cmp_gt_u32 s{sSPIN}, {SPIN}\ns_cbranch_scc1 {D}")
        k(f"s_and_b32 s{sT3}, vcc_lo, s{mask_s}\ns_cmp_eq_u32 s{sT3}, s{mask_s}\ns_cbranch_scc0 {L}")
        k.label(D)
    k(f"v_lshrrev_b32 v16, 2, v0\nv_and_b32 v16, 60, v16")
    k(f"s_mul_i32 s{sT0}, s{sW}, 3\ns_lshl_b32 s{sMASK}, 15, s{sT0}\ns_cmp_eq_u32 s{sW}, 3\ns_cselect_b32 s{sMASK}, 0x3e00, s{sMASK}")
    poll_flags(sFLG, sMASK, 17, 16)
    k(f"s_lshl_b32 s{sT0}, s{sW}, 2\nv_add_u32 v16, s{sT0}, v21")
    one_lane(lambda: k.dsop(f"ds_write_b32 v16, v6 offset:{4*C_CLAND}"))
    stamp(7)
    def phase2(steps, free, first, a_issue):
        n = len(steps); nxt = 0; slot = {}; tok = {}
        def refill():
            nonlocal nxt
            while nxt < n and free:
                sl = free.pop(0); slot[nxt] = sl; tok[nxt] = a_issue(nxt, sl); nxt += 1
        refill()
        for j in range(n):
            k.wait(vm=tok[j])
            (at, ab), (wt, wb) = slot[j], steps[j]
            for rh in range(2):
                for ch in range(2):
                    d = 40 + 16 * (2 * rh + ch)
                    cc = '0' if (first and j == 0) else f"v[{d}:{d+15}]"
                    k(f"v_mfma_f32_32x32x16_bf16 v[{d}:{d+15}], {at}[{ab+4*rh}:{ab+4*rh+3}], {wt}[{wb+4*ch}:{wb+4*ch+3}], {cc}")
            free.append(slot[j]); free.append(steps[j])
            refill()
    k(f"v_add_u32 v1, {NSTEP*1024}, v0")
    k(f"s_mul_i32 s{sT0}, s{sW}, {19*1024}\ns_add_u32 s{sX2}, s{sAROW}, s{sT0}")
    def a_issue_f(j, sl):
        if j % 4 == 0 and j: k(f"s_add_u32 s{sX2}, s{sX2}, 4096")
        k.vmop(f"buffer_load_dwordx4 {sl[0]}[{sl[1]}:{sl[1]+3}], v0, s[{R_WS}:{R_WS+3}], s{sX2} offen offset:{1024*(j%4)} sc1")
        return k.vmop(f"buffer_load_dwordx4 {sl[0]}[{sl[1]+4}:{sl[1]+7}], v1, s[{R_WS}:{R_WS+3}], s{sX2} offen offset:{1024*(j%4)} sc1")
    k("v_mov_b32 v2, v21")
    phase2([wreg(st) for st in range(19)], [('v', 8), ('v', 16), ('v', 24), ('v', 32)], True, a_issue_f)
    stamp(8)
    k(f"v_lshrrev_b32 v3, 4, v0\nv_and_b32 v4, 31, v3\nv_lshrrev_b32 v3, 5, v3")
    k(f"v_lshlrev_b32 v5, 1, v4\nv_lshl_add_u32 v6, v3, 14, v5")
    k(f"s_lshr_b32 s{sT0}, s{sW}, 1\ns_and_b32 s{sT1}, s{sW}, 1")
    k(f"s_lshl_b32 s{sT2}, s{sPAR}, 1\ns_add_u32 s{sT2}, s{sT2}, s{sT0}\ns_lshl_b32 s{sT2}, s{sT2}, 5")
    k(f"s_lshl_b32 s{sX1}, s{sCB}, 7\ns_lshl_b32 s{sT1}, s{sT1}, 6\ns_add_u32 s{sX1}, s{sX1}, s{sT1}")
    k(f"s_lshl_b32 s{sT0}, s{sC}, 7\ns_add_u32 s{sT0}, s{sT0}, s{sT2}\ns_lshl_b32 s{sT0}, s{sT0}, 10\ns_add_u32 s{sT0}, s{sT0}, s{sX1}")
    k.vmop(f"buffer_load_ushort v24, v5, s[{R_T}:{R_T+3}], s{sX1} offen")
    for i in range(16):
        if i % 4 == 0 and i: k(f"s_add_u32 s{sT0}, s{sT0}, 4096")
        k.vmop(f"buffer_load_ushort v{8+i}, v6, s[{R_X}:{R_X+3}], s{sT0} offen offset:{1024*(i%4)}")
    k(f"s_lshl_b32 s{sT2}, s{sT2}, 2\ns_add_u32 s{sT2}, s{sT2}, {RS}\nv_lshlrev_b32 v3, 6, v3\nv_add_u32 v3, s{sT2}, v3")
    k(f"s_lshl_b32 s{sT0}, s{sW}, 2\nv_add_u32 v4, s{sT0}, v2")
    lds_spin(4, 4 * C_CCONS, 1, 25)
    k(f"v_add_u32 v5, s{sZC}, v0")
    for qd in range(4):
        for rq in range(4):
            k.dsop(f"ds_write_b128 v5, v[{40+16*qd+4*rq}:{43+16*qd+4*rq}] offset:{4096*qd+1024*rq}")
    k("v_mov_b32 v26, 1")
    one_lane(lambda: k.dsop(f"ds_add_u32 v2, v26 offset:{4*C_FDUMP}"))
    for i in range(4):
        k.dsop(f"ds_read_b128 v[{104+4*i}:{107+4*i}], v3 offset:{MM-RS+16*i}")
    k.wait(lg='all')
    for i in range(4):
        k.dsop(f"ds_read_b128 v[{40+4*i}:{43+4*i}], v3 offset:{SD-RS+16*i}")
        k.dsop(f"ds_read_b128 v[{56+4*i}:{59+4*i}], v3 offset:{16*i}")
    k.wait(vm='all', lg='all')
    k("v_lshlrev_b32 v24, 16, v24")
    for i in range(16): k(f"v_lshlrev_b32 v{8+i}, 16, v{8+i}")
    for i in range(16): k(f"v_sub_f32 v{104+i}, v{8+i}, v{104+i}")
    for i in range(16): rbf(104 + i, 104 + i)
    for i in range(16): k(f"v_mul_f32 v{72+i}, v{104+i}, v{56+i}")
    for i in range(16): k(f"v_fma_f32 v{104+i}, -v{72+i}, v{40+i}, v{104+i}")
    for i in range(16): k(f"v_fmac_f32 v{72+i}, v{104+i}, v{56+i}")
    for i in range(16): rbf(72 + i, 72 + i)
    for i in range(16): k(f"v_mul_f32 v{72+i}, v{72+i}, v24")
    for i in range(16): rbf(72 + i, 72 + i)
    for i in range(16): k(f"v_add_f32 v{8+i}, v{8+i}, v{72+i}")
    lds_spin(2, 4 * C_FDUMP, 4, 25)
    k(f"s_lshl_b32 s{sT0}, s{sW}, 12\ns_add_u32 s{sT0}, s{sT0}, {ZC0}\nv_add_u32 v6, s{sT0}, v0")
    for src in range(4):
        for rq in range(4):
            k.dsop(f"ds_read_b128 v[{40+16*src+4*rq}:{43+16*src+4*rq}], v6 offset:{ZCS*src+1024*rq}")
    k.wait(lg='all')
    for src in range(4):
        for i in range(0, 16, 2): k(f"v_pk_add_f32 v[{8+i}:{9+i}], v[{8+i}:{9+i}], v[{40+16*src+i}:{41+16*src+i}]")
    k(f"s_lshl_b32 s{sT0}, s{sW}, 12\nv_add_u32 v5, s{sT0}, v5")
    for rq in range(4): k.dsop(f"ds_write_b128 v5, v[{8+4*rq}:{11+4*rq}] offset:{1024*rq}")
    one_lane(lambda: k.dsop(f"ds_write_b32 v4, v26 offset:{4*C_FRES}"))
    k.wait(lg='all')
    stamp(9)
    def ts_out():
        if TSON:
            k(f"v_lshrrev_b32 v0, 2, v0\nbuffer_store_dword v{vTS}, v0, s[{R_WS}:{R_WS+3}], s{sTSB} offen\ns_waitcnt vmcnt(0)")
    ts_out()
    k("s_endpgm")

    k.label("S_START")
    k.vm = []; k.lg = []
    k(f"s_load_dwordx2 s[{R_1}:{R_1+1}], s[0:1], 24\ns_load_dwordx2 s[{R_2}:{R_2+1}], s[0:1], 32\ns_load_dwordx2 s[{R_3}:{R_3+1}], s[0:1], 96")
    k(f"s_load_dwordx4 s[{sP}:{sP+3}], s[0:1], 8\ns_load_dwordx2 s[{sP+4}:{sP+5}], s[0:1], 56\ns_load_dwordx2 s[{R_T}:{R_T+1}], s[0:1], 104")
    k(f"s_memrealtime s[{sP+6}:{sP+7}]")
    srdw(R_1, 512 * 1024); srdw(R_2, 512 * 1024); srdw(R_3, 2048 * 2048); srdw(R_T, 256)
    k(f"s_lshl_b32 s{sBB}, s{sG}, 15\ns_lshl_b32 s{sT0}, s{sW}, 13\ns_add_u32 s{sBB}, s{sBB}, s{sT0}")
    k(f"s_lshl_b32 s{sMW}, s{sW}, 10\ns_add_u32 s{sMW}, s{sMW}, {BOFF}")
    k(f"s_mul_i32 s{sT0}, s{sW}, 6144\ns_lshl_b32 s{sT1}, s{sW}, 12\ns_add_u32 s{sT1}, s{sT1}, 4096\ns_min_u32 s{sT}, s{sT0}, s{sT1}\ns_add_u32 s{sT}, s{sT}, {T0}")
    k(f"v_and_b32 v2, 31, v0\ns_lshl_b32 s{sT0}, s{sG}, 5\nv_add_u32 v2, s{sT0}, v2\nv_lshlrev_b32 v2, 1, v2")
    def dma_b(slot_s):
        return [(f"s_add_u32 m0, s{slot_s}, s{sMW}\ns_add_u32 s{sT1}, s{sBB}, s{sT0}",
                 f"buffer_load_dwordx4 v1, s[{R_1}:{R_1+3}], s{sT1} offen lds"),
                (f"s_add_u32 m0, m0, 4096", f"buffer_load_dwordx4 v1, s[{R_2}:{R_2+3}], s{sT1} offen lds")]
    k("s_waitcnt lgkmcnt(0)")
    stamp(0)
    k.vmop(f"global_load_ushort v92, v2, s[{sP}:{sP+1}]")
    k.vmop(f"global_load_ushort v93, v2, s[{sP+2}:{sP+3}]")
    tpar = k.vmop(f"global_load_ushort v94, v2, s[{sP+4}:{sP+5}]")
    k(f"s_mov_b32 s{sT2}, 0"); emit_dma(dma_x(sT2) + dma_b(sT2)); k(next_kb())
    tb0 = k.vm[-1]
    k(f"s_mov_b32 s{sT2}, {SLOT}"); emit_dma(dma_x(sT2) + dma_b(sT2)); k(next_kb())
    k(f"s_or_b32 s{sT0}, s{sP+6}, 1\nv_mov_b32 v3, s{sT0}\ns_lshl_b32 s{sT1}, s2, 2\ns_add_u32 s{sT1}, s{sT1}, s{sW}")
    k(f"s_cmp_eq_u32 s{sT1}, 3\ns_cbranch_scc0 S_NONON")
    k("v_mov_b32 v4, 0\ns_mov_b64 exec, 1")
    k(f"buffer_store_dword v3, v4, s[{R_T}:{R_T+3}], 0 offen sc1\ns_mov_b64 exec, -1\ns_waitcnt vmcnt(0)")
    k.label("S_NONON")
    k(f"v_lshlrev_b32 v3, 4, v0\nv_add_u32 v3, {CS}, v3\nv_mov_b32 v16, 0\nv_mov_b32 v17, 0\nv_mov_b32 v18, 0\nv_mov_b32 v19, 0")
    k(f"s_cmp_eq_u32 s{sW}, 0\ns_cbranch_scc0 S_NOZ\nds_write_b128 v3, v[16:19]")
    k.label("S_NOZ")
    k(f"v_and_b32 v2, 31, v0\nv_lshrrev_b32 v3, 1, v2\nv_and_b32 v3, 7, v3\nv_lshrrev_b32 v4, 5, v0\nv_xor_b32 v3, v3, v4")
    k(f"s_lshl_b32 s{sT1}, s{sW}, 1\nv_xor_b32 v3, s{sT1}, v3\nv_lshlrev_b32 v3, 4, v3\nv_lshl_add_u32 v2, v2, 7, v3\nv_add_u32 v12, {BOFF}, v2")
    for j in range(1, 4): k(f"v_xor_b32 v{12+j}, {32*j}, v12")
    mk_sel(80)
    for i in list(range(40, 80)) + [84, 85, 86, 87]: k(f"v_mov_b32 v{i}, 0")
    k("v_lshlrev_b32 v0, 4, v0")
    k.wait(vm=tpar)
    AR, AI, NAI, QR, QI, A16R, A16I = 96, 97, 98, 100, 101, 102, 103
    k("v_lshlrev_b32 v92, 16, v92\nv_lshlrev_b32 v93, 16, v93\nv_lshlrev_b32 v94, 16, v94")
    k("v_mul_f32 v94, 0x3fb8aa3b, v94\nv_exp_f32 v94, v94"); rbf(94, 94)
    k("v_mul_f32 v88, v94, v92\nv_mul_f32 v89, v94, v93")
    k("v_mul_f32 v88, 0x3fb8aa3b, v88\nv_exp_f32 v88, v88")
    k("v_mul_f32 v89, 0.15915494, v89\nv_fract_f32 v89, v89\nv_sin_f32 v90, v89\nv_cos_f32 v91, v89")
    k(f"v_mul_f32 v{AR}, v88, v91\nv_mul_f32 v{AI}, v88, v90\nv_sub_f32 v{NAI}, 0, v{AI}")
    k(f"v_mul_f32 v88, v92, v92\nv_fmac_f32 v88, v93, v93\nv_rcp_f32 v88, v88\nv_add_f32 v89, -1.0, v{AR}")
    k(f"v_add_f32 v88, v88, v88")
    k(f"v_mul_f32 v{QR}, v89, v92\nv_fmac_f32 v{QR}, v{AI}, v93\nv_mul_f32 v{QI}, v{AI}, v92\nv_fma_f32 v{QI}, -v89, v93, v{QI}")
    k(f"v_mul_f32 v{QR}, v{QR}, v88\nv_mul_f32 v{QI}, v{QI}, v88")
    csq(88, 89, AR, AI); csq(90, 91, 88, 89); csq(88, 89, 90, 91); csq(A16R, A16I, 88, 89)
    SSET = [16, 28]
    def s_reads(j):
        b = SSET[j & 1]; j &= 3
        return [f"ds_read_b128 v[{b}:{b+3}], v{8+j}", f"ds_read_b128 v[{b+4}:{b+7}], v{12+j}", f"ds_read_b128 v[{b+8}:{b+11}], v{12+j} offset:4096"]
    def s_mf(j):
        b = SSET[j & 1]
        return [f"v_mfma_f32_32x32x16_bf16 v[{40+16*i}:{55+16*i}], v[{b}:{b+3}], v[{b+4+4*i}:{b+7+4*i}], v[{40+16*i}:{55+16*i}]" for i in range(2)]
    def s_small():
        b = SSET[0]
        return [f"v_mfma_f32_16x16x32_bf16 v[{72+4*i}:{75+4*i}], v[80:83], v[{b+4+4*i}:{b+7+4*i}], v[{72+4*i}:{75+4*i}]" for i in range(2)]
    def s_stats(j):
        b = SSET[j & 1]; L = []
        for i in range(4):
            t = 88 + 2 * (i & 1)
            L += [T(f"v_lshlrev_b32 v{t}, 16, v{b+i}"), T(f"v_and_b32 v{t+1}, s{sHI}, v{b+i}"),
                  T(f"v_add_f32 v84, v84, v{t}"), T(f"v_add_f32 v85, v85, v{t+1}"),
                  T(f"v_fmac_f32 v86, v{t}, v{t}"), T(f"v_fmac_f32 v87, v{t+1}, v{t+1}")]
        return L
    k("s_waitcnt vmcnt(4) lgkmcnt(0)\ns_barrier")
    stamp(1)
    for x in s_reads(0): k.dsop(x)
    k(f"s_mov_b32 s{sIT}, 0")
    k.label("S_LOOP")
    k.vm = []
    body(s_reads, s_mf, s_small, s_stats, [T(ldslot)] + [TV(x) for x in dma_x(sT2) + dma_b(sT2)] + [T(next_kb())], 4, False)
    k(f"s_add_u32 s{sIT}, s{sIT}, 1\ns_cmp_lt_u32 s{sIT}, 6\ns_cbranch_scc1 S_LOOP")
    k.vm = []
    ex = []
    ex.append(lambda: (k("v_mov_b32 v2, 0"), k.vmop(f"buffer_load_dword v3, v2, s[{R_T}:{R_T+3}], 0 offen sc1")))
    for e in range(3):
        pre = f"s_add_u32 s{sIT}, s{sW}, {76+4*e}\n"
        L = w2_dma(sIT, 1, sT, 2048 * e)
        if e == 2:
            L[0] = (L[0][0] + f"s_cmp_gt_u32 s{sW}, 1\ns_cselect_b32 m0, {LDSB}, m0\n", L[0][1])
        ex.append(TV((pre + L[0][0], L[0][1]))); ex.append(TV(L[1]))
    body(s_reads, s_mf, s_small, s_stats, ex, 7, False)
    body(s_reads, s_mf, s_small, s_stats, [], 0, True)
    stamp(2)
    k(f"v_lshrrev_b32 v16, 4, v0\nv_and_b32 v17, 15, v16\nv_lshlrev_b32 v17, 2, v17\nv_add_u32 v17, {CS+384}, v17")
    for i in range(2):
        k.dsop(f"ds_add_f32 v17, v{72+4*i} offset:{128*i}"); k.dsop(f"ds_add_f32 v17, v{73+4*i} offset:{128*i+64}")
    k("v_add_f32 v84, v84, v85\nv_add_f32 v86, v86, v87\nv_mov_b32 v85, v84\nv_mov_b32 v87, v86")
    k("v_permlane32_swap_b32 v84, v85\nv_permlane32_swap_b32 v86, v87")
    k("v_add_f32 v84, v84, v85\nv_add_f32 v86, v86, v87")
    k("v_mul_f32 v84, 0x3b000000, v84\nv_mul_f32 v86, 0x3b000000, v86\nv_fma_f32 v86, -v84, v84, v86\nv_max_f32 v86, 0, v86")
    rbf(86, 86); k("v_add_f32 v86, 0x3727c5ac, v86"); rbf(86, 86); k("v_sqrt_f32 v86, v86"); rbf(84, 84); rbf(86, 86)
    k("v_rcp_f32 v85, v86")
    k("v_and_b32 v18, 3, v16\nv_bfe_u32 v19, v16, 2, 1\nv_lshl_or_b32 v18, v19, 4, v18\nv_bfe_u32 v19, v16, 3, 2\nv_lshl_or_b32 v18, v19, 2, v18")
    k(f"s_lshl_b32 s{sT0}, s{sW}, 5\nv_add_u32 v18, s{sT0}, v18\nv_lshlrev_b32 v18, 2, v18\nv_add_u32 v18, {RS}, v18")
    k("v_mul_f32 v87, v84, v85\nv_sub_f32 v87, 0, v87")
    k.dsop("ds_write_b32 v18, v85"); k.dsop(f"ds_write_b32 v18, v87 offset:{NMR-RS}")
    k.dsop(f"ds_write_b32 v18, v84 offset:{MM-RS}"); k.dsop(f"ds_write_b32 v18, v86 offset:{SD-RS}")
    k(f"v_mov_b32 v6, {CNT}")
    k.wait(vm='all')
    k(f"s_mov_b32 s{sSPIN}, 0")
    k.label("S_NL")
    k(f"v_readfirstlane_b32 s{sNONCE}, v3\ns_add_u32 s{sSPIN}, s{sSPIN}, 1\ns_cmp_lg_u32 s{sNONCE}, 0\ns_cbranch_scc1 S_NOK")
    k(f"s_cmp_gt_u32 s{sSPIN}, {SPIN}\ns_cbranch_scc1 S_NOK")
    k(f"buffer_load_dword v3, v2, s[{R_T}:{R_T+3}], 0 offen sc1\ns_waitcnt vmcnt(0)\ns_branch S_NL")
    k.label("S_NOK")
    k.dsop(f"ds_write_b32 v6, v3 offset:{4*C_NONCE}")
    k(f"v_lshrrev_b32 v19, 5, v16\nv_and_b32 v17, 31, v16")
    k(f"s_lshl_b32 s{sT0}, s{sW}, 7\ns_add_u32 s{sT0}, s{sT0}, {RS}\nv_lshlrev_b32 v2, 6, v19\nv_add_u32 v2, s{sT0}, v2")
    k(f"v_lshlrev_b32 v3, 2, v17\nv_add_u32 v3, {CS+384}, v3")
    k(f"s_lshl_b32 s{sT0}, s{sW}, 9\ns_add_u32 s{sT0}, s{sT0}, {EX1}\nv_lshlrev_b32 v4, 3, v16\nv_add_u32 v4, s{sT0}, v4")
    k(f"v_mov_b32 v94, v17\nv_mov_b32 v95, v19")
    k.wait(lg='all')
    k("s_barrier")
    stamp(3)
    for i in range(4): k.dsop(f"ds_read_b128 v[{8+4*i}:{11+4*i}], v2 offset:{16*i}")
    k.dsop("ds_read_b32 v72, v3"); k.dsop("ds_read_b32 v74, v3 offset:128")
    for i in range(4): k.dsop(f"ds_read_b128 v[{24+4*i}:{27+4*i}], v2 offset:{NMR-RS+16*i}")
    k.wait(lg=k.lg[3])
    for ri in range(2):
        for i in range(0, 16, 2):
            b = 40 + 16 * ri + i
            k(f"v_pk_mul_f32 v[{b}:{b+1}], v[{b}:{b+1}], v[{8+i}:{9+i}]")
    k.wait(lg='all')
    for i in range(0, 16, 2):
        for ri in range(2):
            b = 40 + 16 * ri + i
            k(f"v_pk_fma_f32 v[{b}:{b+1}], v[{24+i}:{25+i}], v[{72+2*ri}:{73+2*ri}], v[{b}:{b+1}] op_sel_hi:[1,0,1]")
    for i in range(1, 16):
        r, m = 40 + i, 56 + i
        k(f"v_fmac_f32 v{r}, v{AR}, v{r-1}\nv_fmac_f32 v{m}, v{AR}, v{m-1}\nv_fmac_f32 v{r}, v{NAI}, v{m-1}\nv_fmac_f32 v{m}, v{AI}, v{r-1}")
    k.dsop("ds_write2_b32 v4, v55, v71 offset0:0 offset1:1")
    k("v_mov_b32 v92, 1")
    one_lane(lambda: k.dsop(f"ds_add_u32 v6, v92 offset:{4*C_E}"))
    stamp(4)
    k(f"s_lshl_b32 s{sT0}, s{sG}, 4\ns_add_u32 s{sT0}, s{sT0}, s{sC}\ns_lshl_b32 s{sX1}, s{sT0}, 9\ns_add_u32 s{sX1}, s{sX1}, {GR}")
    k(f"v_lshlrev_b32 v72, 4, v94")
    k(f"v_lshlrev_b32 v73, 3, v94\nv_add_u32 v73, {EX1}, v73")
    k(f"s_cmp_eq_u32 s{sW}, 3\ns_cbranch_scc0 S_NOPUB")
    lds_spin(6, 4 * C_E, 4, 74)
    for sg in range(7): k.dsop(f"ds_read_b64 v[{8+2*sg}:{9+2*sg}], v73 offset:{256*sg}")
    k.dsop(f"ds_read_b32 v24, v73 offset:{256*7}"); k.dsop(f"ds_read_b32 v26, v73 offset:{256*7+4}")
    k(f"v_mov_b32 v25, s{sNONCE}\nv_mov_b32 v27, s{sNONCE}")
    k.wait(lg='all')
    for sg in range(1, 8):
        dr, di = (8 + 2 * sg, 9 + 2 * sg) if sg < 7 else (24, 26)
        cfma(dr, di, A16R, A16I, 6 + 2 * sg, 7 + 2 * sg)
    k(f"s_mov_b64 exec, 0xffffffff\nbuffer_store_dwordx4 v[24:27], v72, s[{R_WS}:{R_WS+3}], s{sX1} offen sc1\ns_mov_b64 exec, -1")
    k.label("S_NOPUB")
    stamp(5)
    k(f"v_lshlrev_b32 v74, 9, v95\nv_sub_u32 v74, v72, v74\nv_add_u32 v75, 512, v74\nv_add_u32 v74, 1536, v74")
    k(f"s_lshl_b32 s{sT0}, s{sW}, 11\ns_add_u32 s{sT0}, s{sT0}, 2048\ns_sub_u32 s{sX2}, s{sX1}, s{sT0}")
    k(f"s_lshl_b32 s{sT0}, s{sW}, 2\nv_add_u32 v76, s{sT0}, v95\nv_cmp_gt_u32 s[{sM0}:{sM0+1}], s{sC}, v76\nv_add_u32 v76, 2, v76\nv_cmp_gt_u32 s[{sM1}:{sM1+1}], s{sC}, v76")
    GA, GB = 80, 84
    def gload():
        k(f"buffer_load_dwordx4 v[{GA}:{GA+3}], v74, s[{R_WS}:{R_WS+3}], s{sX2} offen sc1\nbuffer_load_dwordx4 v[{GB}:{GB+3}], v75, s[{R_WS}:{R_WS+3}], s{sX2} offen sc1")
    gload()
    k("v_lshrrev_b32 v16, 4, v0")
    k("v_bfe_u32 v20, v16, 2, 2\nv_lshrrev_b32 v21, 5, v16\nv_lshl_add_u32 v20, v21, 2, v20\nv_lshlrev_b32 v20, 7, v20")
    k("v_bfe_u32 v21, v16, 3, 1\nv_lshl_add_u32 v20, v21, 6, v20\nv_bfe_u32 v21, v16, 4, 1\nv_lshl_add_u32 v20, v21, 5, v20")
    k(f"v_and_b32 v21, 3, v16\nv_lshl_add_u32 v20, v21, 3, v20\nv_add_u32 v20, s{sT}, v20\nv_xor_b32 v21, 64, v20")
    k(f"s_movk_i32 s{sT0}, 4096\ns_cmp_gt_u32 s{sW}, 1\ns_cselect_b32 s{sT0}, 2048, s{sT0}\nv_add_u32 v22, s{sT0}, v20\nv_add_u32 v23, s{sT0}, v21")
    for e in range(2):
        for x in w2_reads(0, 2048 * e, 20, 21, ('v', 104 + 8 * e)): k.dsop(x)
    for x in w2_reads(0, 0, 22, 23, ('v', 120)): k.dsop(x)
    for i in range(16):
        r, m = 40 + i, 56 + i
        k(f"v_mul_f32 v88, v{QR}, v{r}\nv_mul_f32 v89, v{QI}, v{r}\nv_fma_f32 v{r}, -v{QI}, v{m}, v88\nv_fma_f32 v{m}, -v{QR}, v{m}, -v89")
    csq(88, 89, A16R, A16I); csq(90, 91, 88, 89); csq(76, 77, 90, 91); csq(78, 79, 76, 77)
    k(f"v_cmp_eq_u32 vcc, 0, v95\nv_cndmask_b32 v90, v76, 1.0, vcc\nv_cndmask_b32 v91, v77, 0, vcc")
    csq(88, 89, 78, 79)
    k(f"s_bitcmp1_b32 s{sW}, 0\ns_cbranch_scc0 S_W1")
    cmul(76, 77, 90, 91, 88, 89); k("v_mov_b32 v90, v76\nv_mov_b32 v91, v77")
    k.label("S_W1")
    k(f"s_bitcmp1_b32 s{sW}, 1\ns_cbranch_scc0 S_W2")
    csq(76, 77, 88, 89); cmul(88, 89, 90, 91, 76, 77); k("v_mov_b32 v90, v88\nv_mov_b32 v91, v89")
    k.label("S_W2")
    lds_spin(6, 4 * C_E, 4, 93)
    for sg in range(6): k.dsop(f"ds_read_b64 v[{8+2*sg}:{9+2*sg}], v73 offset:{256*sg}")
    k(f"s_lshl_b32 s{sT0}, s{sW}, 9\nv_add_u32 v93, s{sT0}, v73")
    k.dsop("ds_read_b64 v[20:21], v93")
    k("v_mov_b32 v76, 0\nv_mov_b32 v77, 0\nv_mov_b32 v88, 1.0\nv_mov_b32 v89, 0")
    k.wait(lg='all')
    for t in range(3):
        k(f"s_cmp_le_u32 s{sW}, {t}\ns_cbranch_scc1 S_HD")
        cfma(8 + 4 * t, 9 + 4 * t, A16R, A16I, 76, 77)
        cfma(10 + 4 * t, 11 + 4 * t, A16R, A16I, 8 + 4 * t, 9 + 4 * t)
        k(f"v_mov_b32 v76, v{10+4*t}\nv_mov_b32 v77, v{11+4*t}")
        cmul(22, 23, A16R, A16I, 88, 89); cmul(88, 89, A16R, A16I, 22, 23)
    k.label("S_HD")
    cfma(20, 21, A16R, A16I, 76, 77); cmul(22, 23, A16R, A16I, 88, 89)
    k(f"v_cmp_eq_u32 vcc, 0, v95\nv_cndmask_b32 v76, v20, v76, vcc\nv_cndmask_b32 v77, v21, v77, vcc\nv_cndmask_b32 v88, v22, v88, vcc\nv_cndmask_b32 v89, v23, v89, vcc")
    k(f"v_mov_b32 v8, v{AR}\nv_mov_b32 v24, v{AI}")
    for i in range(1, 16): cmul(8 + i, 24 + i, AR, AI, 7 + i, 23 + i)
    k(f"v_lshrrev_b32 v72, 2, v94\nv_and_b32 v72, 3, v72\nv_lshlrev_b32 v73, 1, v95\nv_xor_b32 v72, v72, v73\nv_lshlrev_b32 v72, 4, v72")
    k(f"v_lshl_add_u32 v72, v94, 6, v72\nv_add_u32 v72, s{sT}, v72\nv_xor_b32 v73, 16, v72")
    k("v_lshrrev_b32 v4, 4, v0")
    k("v_and_b32 v2, 1, v4\nv_lshlrev_b32 v2, 1, v2\nv_bfe_u32 v3, v4, 4, 1\nv_or_b32 v2, v2, v3\nv_lshlrev_b32 v3, 1, v95\nv_xor_b32 v2, v2, v3\nv_lshlrev_b32 v2, 4, v2")
    k("v_bfe_u32 v3, v4, 1, 1\nv_lshl_add_u32 v2, v3, 3, v2\nv_bfe_u32 v3, v4, 2, 2\nv_lshl_add_u32 v2, v3, 6, v2\nv_lshl_add_u32 v2, v95, 9, v2")
    k(f"v_add_u32 v2, s{sT}, v2\nv_xor_b32 v3, 16, v2")
    k(f"v_lshlrev_b32 v4, 3, v94\nv_add_u32 v4, {CIN}, v4")
    stamp(6)
    k(f"s_mov_b32 s{sSPIN}, 0")
    k.label("S_GL")
    k("s_waitcnt vmcnt(0)")
    k(f"v_cmp_eq_u32 vcc, s{sNONCE}, v{GA+1}\nv_cmp_eq_u32 s[44:45], s{sNONCE}, v{GA+3}\ns_and_b64 s[44:45], s[44:45], vcc\ns_orn2_b64 s[44:45], s[44:45], s[{sM0}:{sM0+1}]")
    k(f"v_cmp_eq_u32 vcc, s{sNONCE}, v{GB+1}\nv_cmp_eq_u32 s[46:47], s{sNONCE}, v{GB+3}\ns_and_b64 s[46:47], s[46:47], vcc\ns_orn2_b64 s[46:47], s[46:47], s[{sM1}:{sM1+1}]")
    k(f"s_and_b64 s[44:45], s[44:45], s[46:47]\ns_cmp_eq_u64 s[44:45], -1\ns_cbranch_scc1 S_GOK")
    k(f"s_add_u32 s{sSPIN}, s{sSPIN}, 1\ns_cmp_gt_u32 s{sSPIN}, {SPIN}\ns_cbranch_scc1 S_GOK")
    gload()
    k("s_branch S_GL")
    k.label("S_GOK")
    k(f"v_cndmask_b32 v{GA}, 0, v{GA}, s[{sM0}:{sM0+1}]\nv_cndmask_b32 v{GA+2}, 0, v{GA+2}, s[{sM0}:{sM0+1}]")
    k(f"v_cndmask_b32 v{GB}, 0, v{GB}, s[{sM1}:{sM1+1}]\nv_cndmask_b32 v{GB+2}, 0, v{GB+2}, s[{sM1}:{sM1+1}]")
    cfma(GA, GA + 2, 78, 79, GB, GB + 2)
    cmul(GB, GB + 1, 90, 91, GA, GA + 2)
    k.dsop(f"ds_add_f32 v4, v{GB}"); k.dsop(f"ds_add_f32 v4, v{GB+1} offset:4")
    one_lane(lambda: k.dsop(f"ds_add_u32 v6, v92 offset:{4*C_CARRY}"))
    lds_spin(6, 4 * C_CARRY, 4, 93)
    k.dsop("ds_read_b64 v[80:81], v4")
    k.wait(lg='all')
    stamp(7)
    cfma(76, 77, 88, 89, 80, 81)
    cmul(80, 81, QR, QI, 76, 77)
    for i in range(16):
        r, m = 40 + i, 56 + i
        k(f"v_fmac_f32 v{r}, v{8+i}, v80\nv_fma_f32 v{m}, -v{8+i}, v81, v{m}\nv_fma_f32 v{r}, -v{24+i}, v81, v{r}\nv_fma_f32 v{m}, -v{24+i}, v80, v{m}")
    for i in range(16): k(f"v_cvt_pk_bf16_f32 v{8+i}, v{40+2*i}, v{41+2*i}")
    for ri in range(2):
        for x in range(2): k.dsop(f"ds_write_b128 v{72+x}, v[{8+8*ri+4*x}:{11+8*ri+4*x}] offset:{2048*ri}")
    k.wait(lg='all')
    for u in range(4):
        for t in range(2): k.dsop(f"ds_read_b64_tr_b16 v[{24+4*u+2*t}:{25+4*u+2*t}], v{2+t} offset:{1024*u+256*t}")
    k(f"s_lshl_b32 s{sT0}, s{sG}, 12\ns_add_u32 s{sT0}, s{sT0}, {86*1024}\ns_add_u32 s{sT0}, s{sT0}, s{sHROW}")
    for u in range(4):
        k.wait(lg=k.lg[1])
        k.vmop(f"buffer_store_dwordx4 v[{24+4*u}:{27+4*u}], v0, s[{R_WS}:{R_WS+3}], s{sT0} offen offset:{1024*u} sc1")
    stamp(8)
    k(f"s_lshl_b32 s{sT0}, s{sW}, 2\nv_add_u32 v4, s{sT0}, v6")
    k(f"v_lshrrev_b32 v2, 1, v94\nv_and_b32 v2, 7, v2\nv_xor_b32 v2, v2, v95\nv_lshlrev_b32 v2, 4, v2\nv_lshl_add_u32 v2, v94, 7, v2")
    for z, zs in enumerate((sZA, sZB, sZC)):
        k(f"v_add_u32 v{8+4*z}, s{zs}, v2")
        for ks in range(1, 4): k(f"v_xor_b32 v{8+4*z+ks}, {32*ks}, v{8+4*z}")
    k.wait(vm='all')
    one_lane(lambda: k.dsop(f"ds_add_rtn_u32 v20, v6, v92 offset:{4*C_HACK}"))
    k.wait(lg='all')
    k(f"v_readfirstlane_b32 s{sT0}, v20\nv_mov_b32 v21, s{sNONCE}\ns_lshl_b32 s{sT1}, s{sG}, 2\ns_add_u32 s{sT1}, s{sT1}, s{sFLG}\ns_add_u32 s{sT1}, s{sT1}, 2048")
    k(f"s_cmp_eq_u32 s{sT0}, 3\ns_cselect_b32 s{sT1}, s{sT1}, {OOB}\nv_mov_b32 v20, 0")
    one_lane(lambda: k.vmop(f"buffer_store_dword v21, v20, s[{R_WS}:{R_WS+3}], s{sT1} offen sc1"))
    stamp(9)
    lds_spin(4, 4 * C_CLAND, 1, 20)
    for j in range(16):
        gl, ri, hs = j >> 2, (j >> 1) & 1, j & 1
        ph, ks = gl >> 1, 2 * (gl & 1) + hs
        for cb2 in range(2):
            zs, zo = UL[4 * ri + 2 * ph + cb2]
            k.dsop(f"ds_read_b128 a[{8*j+4*cb2}:{8*j+4*cb2+3}], v{8+4*'abc'.index(zs)+ks} offset:{zo}")
            if len(k.lg) > 14: k.wait(lg=k.lg[2])
    k.wait(lg='all')
    one_lane(lambda: k.dsop(f"ds_write_b32 v4, v92 offset:{4*C_CCONS}"))
    stamp(10)
    k(f"v_lshrrev_b32 v2, 2, v0\nv_and_b32 v2, 60, v2\ns_mov_b32 s{sMASK}, 0xe000")
    poll_flags(sFLG, sMASK, 3, 2)
    k(f"v_add_u32 v1, {NSTEP*1024}, v0")
    k(f"s_add_u32 s{sT0}, s{sW}, 76\ns_lshl_b32 s{sT0}, s{sT0}, 10\ns_add_u32 s{sX2}, s{sAROW}, s{sT0}")
    def a_issue_e(j, sl):
        if j == 1: k(f"s_add_u32 s{sX2}, s{sX2}, 4096")
        if j == 2: k(f"s_add_u32 s{sX2}, s{sX2}, 4096\ns_cmp_gt_u32 s{sW}, 1\ns_cselect_b32 s{sX2}, {OOB}, s{sX2}")
        k.vmop(f"buffer_load_dwordx4 {sl[0]}[{sl[1]}:{sl[1]+3}], v0, s[{R_WS}:{R_WS+3}], s{sX2} offen sc1")
        return k.vmop(f"buffer_load_dwordx4 {sl[0]}[{sl[1]+4}:{sl[1]+7}], v1, s[{R_WS}:{R_WS+3}], s{sX2} offen sc1")
    free = [('v', 8), ('v', 16), ('v', 24), ('v', 32)]
    phase2([('v', 104), ('v', 112), ('v', 120)], free, True, a_issue_e)
    stamp(11)
    k(f"s_lshl_b32 s{sT0}, s{sW}, 2\ns_lshl_b32 s{sMASK}, 15, s{sT0}\ns_add_u32 s{sX1}, s{sFLG}, 2048")
    poll_flags(sX1, sMASK, 3, 2)
    stamp(12)
    k(f"s_lshl_b32 s{sT0}, s{sW}, 14\ns_add_u32 s{sT0}, s{sT0}, {86*1024}\ns_add_u32 s{sX2}, s{sAROW}, s{sT0}")
    phase2([('a', 8 * j) for j in range(16)], free, False, a_issue_f)
    stamp(13)
    k(f"v_add_u32 v2, s{sZA}, v0\nv_add_u32 v3, s{sZB}, v0\nv_mov_b32 v1, 1")
    k(f"s_cmp_eq_u32 s{sW}, 0\ns_cbranch_scc1 S_R0\ns_cmp_eq_u32 s{sW}, 1\ns_cbranch_scc1 S_R1\ns_cmp_eq_u32 s{sW}, 2\ns_cbranch_scc1 S_R2")
    for q in (3, 2, 1, 0):
        k.label(f"S_R{q}")
        k.lg = []
        k("s_nop 7")
        for i in range(3):
            qd = (q + 1 + i) & 3
            for rq in range(4):
                k.dsop(f"ds_write_b128 v{2+(i>>1)}, v[{40+16*qd+4*rq}:{43+16*qd+4*rq}] offset:{4096*(i&1)+1024*rq}")
        one_lane(lambda: k.dsop(f"ds_add_u32 v6, v1 offset:{4*C_SDUMP}"))
        for i in range(16): k(f"v_mov_b32 v{8+i}, v{40+16*q+i}")
        if q: k("s_branch S_RD")
    k.label("S_RD")
    lds_spin(4, 4 * C_FRES, 1, 24)
    k(f"s_lshl_b32 s{sT0}, s{sW}, 12\ns_add_u32 s{sT0}, s{sT0}, s{sZC}\nv_add_u32 v5, s{sT0}, v0")
    for rq in range(4): k.dsop(f"ds_read_b128 v[{104+4*rq}:{107+4*rq}], v5 offset:{1024*rq}")
    for i in range(3):
        base = (ZA0, ZA0 + 4096, ZB0)[i]
        k(f"s_sub_u32 s{sT0}, s{sW}, {1+i}\ns_and_b32 s{sT0}, s{sT0}, 3\ns_lshl_b32 s{sT0}, s{sT0}, 13\ns_add_u32 s{sT0}, s{sT0}, {base}\nv_add_u32 v{25+i}, s{sT0}, v0")
    k(f"v_bfe_u32 v2, v0, 4, 5\nv_lshlrev_b32 v2, 2, v2\nv_lshrrev_b32 v3, 9, v0\nv_lshl_add_u32 v2, v3, 15, v2")
    k(f"s_lshr_b32 s{sT0}, s{sW}, 1\ns_and_b32 s{sT1}, s{sW}, 1\ns_lshl_b32 s{sT2}, s{sPAR}, 1\ns_add_u32 s{sT2}, s{sT2}, s{sT0}\ns_lshl_b32 s{sT2}, s{sT2}, 5")
    k(f"s_lshl_b32 s{sT0}, s{sC}, 7\ns_add_u32 s{sT0}, s{sT0}, s{sT2}\ns_lshl_b32 s{sT0}, s{sT0}, 11\ns_lshl_b32 s{sT1}, s{sT1}, 7\ns_add_u32 s{sT0}, s{sT0}, s{sT1}")
    k(f"s_lshl_b32 s{sT1}, s{sCB}, 8\ns_add_u32 s{sX1}, s{sT0}, s{sT1}")
    k.wait(lg='all')
    for i in range(0, 16, 2): k(f"v_pk_add_f32 v[{8+i}:{9+i}], v[{8+i}:{9+i}], v[{104+i}:{105+i}]")
    lds_spin(6, 4 * C_SDUMP, 4, 24)
    for i in range(3):
        for rq in range(4): k.dsop(f"ds_read_b128 v[{40+16*i+4*rq}:{43+16*i+4*rq}], v{25+i} offset:{1024*rq}")
    for i in range(3):
        k.wait(lg=k.lg[3])
        for j in range(0, 16, 2): k(f"v_pk_add_f32 v[{8+j}:{9+j}], v[{8+j}:{9+j}], v[{40+16*i+j}:{41+16*i+j}]")
    for i in range(16):
        if i % 2 == 0 and i: k(f"s_add_u32 s{sX1}, s{sX1}, 4096")
        k.vmop(f"buffer_store_dword v{8+i}, v2, s[{R_3}:{R_3+3}], s{sX1} offen offset:{2048*(i%2)}")
    stamp(14)
    ts_out()
    k.label("END")
    txt = k.text(P.get('verbose', False))
    return make_file([dict(name=KN, body=txt, grid=256, block=512, lds=LDSB, vgpr=256, accum=128)]), k.nops

P_UNITLOC = [('c', 8192), ('c', 12288), ('a', 0), ('a', 4096), ('b', 0), ('b', 4096), ('c', 0), ('c', 4096)]

if __name__ == '__main__':
    import build
    P = {}
    out = 'k.s'
    for a_ in sys.argv[1:]:
        if '=' in a_:
            x, y = a_.split('='); P[x] = int(y)
        else: out = a_
    t, n = gen(P)
    open(out, 'w').write(t)
    print('nops inserted', n, 'lines', t.count('\n'))
    build.build(out)
```
